```python
import torch

def _softmax(x, axis=-1):
    return torch.softmax(x, dim=axis)
def _gelu(x):
    return torch.nn.functional.gelu(x, approximate="tanh")
def _silu(x):
    return torch.nn.functional.silu(x)
def _sigmoid(x):
    return torch.sigmoid(x)
def _layernorm(x, axis=-1, eps=1e-5):
    m = x.mean(dim=axis, keepdim=True)
    v = x.var(dim=axis, keepdim=True, unbiased=False)
    return (x - m) / torch.sqrt(v + eps)
def _scatter_add(tgt, idx, src, axis=0):
    return tgt.clone().index_add_(axis, idx, src)
def _segment_sum(src, seg, n):
    out = torch.zeros((n,) + src.shape[1:], dtype=src.dtype)
    return out.index_add_(0, seg, src)
def _pad(x, pw):
    flat = tuple(v for pair in reversed(pw) for v in pair)
    return torch.nn.functional.pad(x, flat)

kernel_name = 'concat_heads__gqa_block_cached__gqa_block_cached__near_ridge'

def setup_inputs():

    _w = (lambda a: (lambda t: t.to(torch.bfloat16) if t.is_floating_point() else t)(torch.as_tensor(a)))
    def _A_setup():
        B, Sq, D = 8, 32, 512
        Hq, Hkv, Sk, Dh = 32, 8, 2048, 128
        assert Hq % Hkv == 0, (Hq, Hkv)
        return {
            "x": _w((lambda *s: torch.randn(*s, dtype=torch.bfloat16) * 0.8)(B, Sq, D)),
            "k_cache": _w((lambda *s: torch.randn(*s, dtype=torch.bfloat16) * 0.8)(B, Hkv, Sk, Dh)),
            "v_cache": _w((lambda *s: torch.randn(*s, dtype=torch.bfloat16) * 0.05)(B, Hkv, Sk, Dh)),
            "wq": _w((lambda *s: torch.randn(*s, dtype=torch.bfloat16) * 0.8)(D, Hq * Dh) * (D ** -0.5)),
            "wo": _w((lambda *s: torch.randn(*s, dtype=torch.bfloat16) * 0.05)(Hq * Dh, D) * ((Hq * Dh) ** -0.5)),
        }
    _A_in = _A_setup()

    def _B_setup():
        B, Sq, D = 8, 32, 512
        Hq, Hkv, Sk, Dh = 32, 8, 2048, 128
        assert Hq % Hkv == 0, (Hq, Hkv)
        return {
            "x": _w((lambda *s: torch.randn(*s, dtype=torch.bfloat16) * 0.8)(B, Sq, D)),
            "k_cache": _w((lambda *s: torch.randn(*s, dtype=torch.bfloat16) * 0.8)(B, Hkv, Sk, Dh)),
            "v_cache": _w((lambda *s: torch.randn(*s, dtype=torch.bfloat16) * 0.05)(B, Hkv, Sk, Dh)),
            "wq": _w((lambda *s: torch.randn(*s, dtype=torch.bfloat16) * 0.8)(D, Hq * Dh) * (D ** -0.5)),
            "wo": _w((lambda *s: torch.randn(*s, dtype=torch.bfloat16) * 0.05)(Hq * Dh, D) * ((Hq * Dh) ** -0.5)),
        }
    _B_in = _B_setup()

    return {
        "A_x": _A_in["x"],
        "A_k_cache": _A_in["k_cache"],
        "A_v_cache": _A_in["v_cache"],
        "A_wq": _A_in["wq"],
        "A_wo": _A_in["wo"],
        "B_x": _B_in["x"],
        "B_k_cache": _B_in["k_cache"],
        "B_v_cache": _B_in["v_cache"],
        "B_wq": _B_in["wq"],
        "B_wo": _B_in["wo"],
    }

def reference(A_x, A_k_cache, A_v_cache, A_wq, A_wo, B_x, B_k_cache, B_v_cache, B_wq, B_wo):
    def _A_ref(x, k_cache, v_cache, wq, wo):
        B, Sq, D = x.shape
        Hq, Dh = 32, 128
        Hkv = k_cache.shape[1]
        rep = Hq // Hkv
        q = (lambda x, *d: x.permute(*d))((x @ wq).reshape(B, Sq, Hq, Dh), 0, 2, 1, 3)
        k = (lambda x, n, axis: torch.repeat_interleave(x, n, dim=axis))(k_cache, rep, axis=1)
        v = (lambda x, n, axis: torch.repeat_interleave(x, n, dim=axis))(v_cache, rep, axis=1)
        scores = torch.einsum("bhqd,bhkd->bhqk", q, k) * (Dh ** -0.5)
        p = _softmax(scores, axis=-1)
        o = torch.einsum("bhqk,bhkd->bhqd", p, v)
        return (lambda x, *d: x.permute(*d))(o, 0, 2, 1, 3).reshape(B, Sq, Hq * Dh) @ wo

    def _B_ref(x, k_cache, v_cache, wq, wo):
        B, Sq, D = x.shape
        Hq, Dh = 32, 128
        Hkv = k_cache.shape[1]
        rep = Hq // Hkv
        q = (lambda x, *d: x.permute(*d))((x @ wq).reshape(B, Sq, Hq, Dh), 0, 2, 1, 3)
        k = (lambda x, n, axis: torch.repeat_interleave(x, n, dim=axis))(k_cache, rep, axis=1)
        v = (lambda x, n, axis: torch.repeat_interleave(x, n, dim=axis))(v_cache, rep, axis=1)
        scores = torch.einsum("bhqd,bhkd->bhqk", q, k) * (Dh ** -0.5)
        p = _softmax(scores, axis=-1)
        o = torch.einsum("bhqk,bhkd->bhqd", p, v)
        return (lambda x, *d: x.permute(*d))(o, 0, 2, 1, 3).reshape(B, Sq, Hq * Dh) @ wo

    a = _A_ref(A_x, A_k_cache, A_v_cache, A_wq, A_wo)
    b = _B_ref(B_x, B_k_cache, B_v_cache, B_wq, B_wo)
    return torch.concatenate([a, b], axis=-1)
```

```python
import re
REG_RE = re.compile(r'\b([vsa])\[(\d+):(\d+)\]|\b([vsa])(\d+)\b|\b(vcc|exec|m0|scc)\b')
TRANS = ('v_exp_f32', 'v_log_f32', 'v_rcp_f32', 'v_rsq_f32', 'v_sqrt_f32', 'v_sin_f32', 'v_cos_f32')

def regs_of(op):
    out = []
    for m in REG_RE.finditer(op):
        if m.group(1):
            out += [f"{m.group(1)}{i}" for i in range(int(m.group(2)), int(m.group(3)) + 1)]
        elif m.group(4):
            out.append(f"{m.group(4)}{m.group(5)}")
        else:
            out.append(m.group(6))
    return out

class Rec:
    __slots__ = ('kind', 'defs', 'uses', 'srcc', 'ab', 'states', 'passes', 'mn', 'wide_data', 'd')

class Asm:
    def __init__(self):
        self.lines = []
        self.hist = []
        self.vm = 0
        self.lg = 0
        self.vm_done = 0
        self.lg_done = 0
        self.nops = 0
    def raw(self, s):
        self.lines.append(s)
    def comment(self, s):
        self.lines.append("  ; " + s)
    def label(self, name, conservative=True):
        self.lines.append(name + ":")
        if conservative:
            self.hist = []
    def fence(self, n=16):
        while n > 0:
            k = min(n, 16)
            self.lines.append(f"  s_nop {k-1}")
            n -= k
        self.hist = []
    def parse(self, text):
        t = text.split(';')[0].strip()
        parts = t.split(None, 1)
        mn = parts[0]
        ops = [o.strip() for o in parts[1].split(',')] if len(parts) > 1 else []
        r = Rec(); r.mn = mn; r.defs = set(); r.uses = set(); r.srcc = set(); r.ab = set(); r.states = 1; r.passes = 0; r.wide_data = set(); r.d = ()
        R = [regs_of(o) for o in ops]
        allr = lambda i: set(x for rr in R[i:] for x in rr)
        if mn.startswith('v_mfma'):
            r.kind = 'mfma'
            r.passes = 8 if '32x32' in mn else 4
            r.defs = set(R[0]); r.d = tuple(R[0]); r.ab = set(R[1]) | set(R[2]); r.srcc = set(R[3]); r.uses = r.ab | r.srcc
        elif mn.startswith('v_'):
            r.kind = 'trans' if mn.replace('_e32', '').replace('_e64', '') in TRANS else 'valu'
            if 'permlane' in mn and 'swap' in mn:
                r.defs = set(R[0]) | set(R[1]); r.uses = set(r.defs)
            elif mn.startswith('v_fmac') or mn.startswith('v_pk_fmac'):
                r.defs = set(R[0]); r.uses = allr(0)
            elif mn.startswith(('v_add_co', 'v_sub_co', 'v_addc_co')):
                r.defs = set(R[0]) | set(R[1]); r.uses = allr(2)
            else:
                r.defs = set(R[0]); r.uses = allr(1)
                if mn.startswith('v_cndmask') and len(ops) == 3:
                    r.uses.add('vcc')
        elif mn.startswith('ds_read') or mn.startswith('ds_bpermute') or mn.startswith('ds_swizzle'):
            r.kind = 'ds'; r.defs = set(R[0]); r.uses = allr(1)
        elif mn.startswith('ds_'):
            r.kind = 'ds'; r.uses = allr(0)
        elif mn.startswith(('buffer_load', 'global_load')):
            r.kind = 'vmem'
            if re.search(r'\blds\b', t) or '_lds_' in mn:
                r.uses = allr(0) | {'m0'}; r.kind = 'dma'
            else:
                r.defs = set(R[0]); r.uses = allr(1)
        elif mn.startswith(('buffer_store', 'global_store', 'buffer_atomic', 'global_atomic')):
            r.kind = 'vmem'; r.uses = allr(0)
            if 'x4' in mn or 'x3' in mn:
                r.wide_data = set(R[0]) if mn.startswith('buffer') else set(R[1])
        elif mn == 's_nop':
            r.kind = 'salu'; r.states = int(ops[0], 0) + 1
        elif mn.startswith('s_'):
            r.kind = 'salu'
            if mn.startswith(('s_cmp', 's_cbranch', 's_branch', 's_waitcnt', 's_barrier', 's_sleep', 's_setprio', 's_endpgm', 's_setpc')):
                r.uses = allr(0)
            else:
                r.defs = set(R[0]) if R else set(); r.uses = allr(1)
        else:
            raise ValueError("unknown instr " + text)
        return r
    def need(self, P, X):
        n = 0
        pv = P.kind in ('valu', 'trans')
        xv = X.kind in ('valu', 'trans')
        if pv:
            if X.kind == 'mfma' and (P.defs & X.uses): n = max(n, 2)
            if P.kind == 'trans' and X.kind == 'valu' and (P.defs & X.uses): n = max(n, 1)
            if 'permlane' in X.mn and (P.defs & X.uses): n = max(n, 2)
            if X.mn.startswith(('v_readfirstlane', 'v_readlane')) and (P.defs & X.uses): n = max(n, 1)
            sd = {d for d in P.defs if d[0] == 's' and d != 'scc' or d == 'vcc'}
            if sd:
                if xv and (sd & X.uses): n = max(n, 2)
                if X.kind in ('vmem', 'dma') and (sd & X.uses): n = max(n, 5)
                if X.kind == 'salu' and (sd & X.uses): n = max(n, 1)
        if P.kind == 'mfma':
            big = 12 if P.passes == 8 else 8
            ov = 10 if P.passes == 8 else 6
            war = 7 if P.passes == 8 else 3
            if X.kind == 'mfma':
                if P.defs & X.ab: n = max(n, big)
                if P.defs & X.srcc:
                    if not (P.defs == X.srcc and P.passes == X.passes): n = max(n, ov)
                elif P.defs & X.defs: n = max(n, ov)
            elif X.kind in ('valu', 'trans', 'vmem', 'ds', 'dma'):
                if P.defs & (X.uses | X.defs): n = max(n, big)
                if xv and (P.srcc & X.defs): n = max(n, war)
        if P.kind == 'salu' and 'm0' in P.defs and X.kind == 'dma': n = max(n, 1)
        if P.wide_data and (P.wide_data & X.defs): n = max(n, 2 if xv else 1)
        return n
    def I(self, text):
        X = self.parse(text)
        dist = 0; pad = 0
        for P in reversed(self.hist):
            nd = self.need(P, X)
            if nd > dist: pad = max(pad, nd - dist)
            dist += P.states
            if dist >= 24: break
        if pad:
            self.nops += pad
            k = pad
            while k > 0:
                q = min(k, 16)
                self.lines.append(f"  s_nop {q-1}")
                rr = Rec(); rr.kind = 'salu'; rr.mn = 's_nop'; rr.defs = set(); rr.uses = set(); rr.srcc = set(); rr.ab = set(); rr.states = q; rr.passes = 0; rr.wide_data = set()
                self.hist.append(rr)
                k -= q
        self.lines.append("  " + text)
        self.hist.append(X)
        if len(self.hist) > 40: self.hist = self.hist[-30:]
        tok = None
        if X.kind in ('vmem', 'dma'):
            tok = ('vm', self.vm); self.vm += 1
        elif X.kind == 'ds':
            tok = ('lg', self.lg); self.lg += 1
        return tok
    def wait(self, *toks):
        vmn = None; lgn = None
        for t in toks:
            if t is None: continue
            if isinstance(t, (list, tuple)) and t and isinstance(t[0], (list, tuple)):
                for u in t: self._acc(u)
                continue
            self._acc(t)
        self._flush()
    _pv = -1; _pl = -1
    def _acc(self, t):
        if t is None: return
        if t[0] == 'vm': self._pv = max(self._pv, t[1])
        else: self._pl = max(self._pl, t[1])
    def _flush(self):
        s = []
        if self._pv >= self.vm_done:
            n = self.vm - self._pv - 1
            n = min(n, 63)
            s.append(f"vmcnt({n})"); self.vm_done = self.vm - n
        if self._pl >= self.lg_done:
            n = self.lg - self._pl - 1
            n = min(n, 15)
            s.append(f"lgkmcnt({n})"); self.lg_done = self.lg - n
        self._pv = -1; self._pl = -1
        if s: self.I("s_waitcnt " + " ".join(s))
    def wait_all(self, vm=True, lg=True):
        s = []
        if vm: s.append("vmcnt(0)"); self.vm_done = self.vm
        if lg: s.append("lgkmcnt(0)"); self.lg_done = self.lg
        self.I("s_waitcnt " + " ".join(s))
    def snapshot(self):
        return (self.vm, self.lg, self.vm_done, self.lg_done)
    def restore(self, s):
        self.vm, self.lg, self.vm_done, self.lg_done = s
    def text(self):
        return "\n".join(self.lines) + "\n"
```

```python
import math, struct, sys
from asmlib import Asm
NAME = "concat_heads__gqa_block_cached__gqa_block_cached__near_ridge"
HEADER = open("cdna_kernels/" + NAME + ".s.ref").read().split("; Override launch")[0]

def f32(x): return struct.unpack('<I', struct.pack('<f', x))[0]
CS = (128 ** -0.5) * math.log2(math.e)
TRAW = 8.0 / CS

KR = 0; VR = 81920; NS = 10
XA = VR + 6 * 8192
XO_BASE = 0; XO_STRIDE = 5120
FL_BASE = 32 << 20
CP_BASE = 64 << 20
ST_BASE = 128 << 20
DUMP_BASE = 160 << 20

VO = 0; VQ = 64; VK = 96; VV = 128; VS = 160; VP = 176
KA = 184
VA = 200
VOFK = 208; VOFV = 209
M = 210; NMC = 211; MT = 212; L0 = 213
INITB = 217
T0 = 218
LANE = 226; L15 = 227; L4 = 228; L31 = 229; HALF = 230
VOFQ = 231
XAD = 232
XB2 = 236
LN16 = 244
DUMMY = 245
T8 = 246
sKVH, sBLK, sB, sS, sW, sH, sPAR = 3, 4, 5, 6, 7, 8, 9
SX, SWQ, SK, SV, SWO, SWS, SDBG = 12, 16, 20, 24, 28, 32, 36
sC = 40; sM0W = 41; sT = 42
sRET = 50
sSEL0, sSEL1 = 52, 53
sST = 56
sCNT = 90

def srd(n): return f"s[{n}:{n+3}]"
def vr(a, n): return f"v[{a}:{a+n-1}]"

class Gen:
    def __init__(self, stamps=False, dump=None, ntw=False, first_kv=6, wq_depth=6):
        self.a = Asm(); self.stamps = stamps; self.dump = dump; self.nst = 0
        self.ntw = ntw; self.first_kv = first_kv; self.wq_depth = wq_depth
    def stamp(self, idx):
        if self.stamps:
            self.a.I(f"s_memrealtime s[{sST+2*idx}:{sST+2*idx+1}]")
            self.a.raw("  s_waitcnt lgkmcnt(0)"); self.a.lg_done = self.a.lg
            self.nst = max(self.nst, idx + 1)

    def prologue(self):
        a = self.a; I = a.I
        I("s_cmp_ge_u32 s2, 256")
        I("s_cbranch_scc1 L_end")
        self.stamp(0)
        I(f"s_and_b32 s{sKVH}, s2, 7")
        I(f"s_lshr_b32 s{sT}, s2, 3")
        I(f"s_lshr_b32 s{sBLK}, s{sT}, 4")
        I(f"s_lshr_b32 s{sB}, s{sT}, 1")
        I(f"s_and_b32 s{sB}, s{sB}, 7")
        I(f"s_and_b32 s{sS}, s{sT}, 1")
        I(f"s_mul_i32 s{sT}, s{sBLK}, 40")
        I(f"s_add_u32 s10, s0, s{sT}")
        I("s_addc_u32 s11, s1, 0")
        I(f"s_load_dwordx2 s[{SX}:{SX+1}], s[10:11], 0")
        I(f"s_load_dwordx2 s[{SK}:{SK+1}], s[10:11], 8")
        I(f"s_load_dwordx2 s[{SV}:{SV+1}], s[10:11], 16")
        I(f"s_load_dwordx2 s[{SWQ}:{SWQ+1}], s[10:11], 24")
        I(f"s_load_dwordx2 s[{SWO}:{SWO+1}], s[10:11], 32")
        I(f"s_load_dwordx2 s[{SDBG}:{SDBG+1}], s[0:1], 88")
        I(f"s_load_dwordx2 s[{SWS}:{SWS+1}], s[0:1], 96")
        I(f"v_lshrrev_b32 v{T0}, 6, v0")
        I(f"v_and_b32 v{LANE}, 63, v0")
        I(f"v_readfirstlane_b32 s{sW}, v{T0}")
        I(f"v_and_b32 v{L15}, 15, v{LANE}")
        I(f"v_lshrrev_b32 v{L4}, 4, v{LANE}")
        I(f"v_and_b32 v{L31}, 31, v{LANE}")
        I(f"v_lshrrev_b32 v{HALF}, 5, v{LANE}")
        I(f"v_lshlrev_b32 v{LN16}, 4, v{LANE}")
        I(f"s_and_b32 s{sH}, s{sW}, 3")
        I(f"s_lshr_b32 s{sPAR}, s{sW}, 2")
        I(f"s_lshl_b32 s{sM0W}, s{sW}, 10")
        I(f"s_mov_b32 s{sC}, 0x{f32(CS):08x}")
        I(f"s_mov_b32 s{sSEL0}, 0x05040100")
        I(f"s_mov_b32 s{sSEL1}, 0x07060302")
        I(f"s_lshl_b32 s{sT}, s{sKVH}, 2")
        I(f"s_add_u32 s{sT}, s{sT}, s{sH}")
        I(f"s_lshl_b32 s{sT}, s{sT}, 8")
        I(f"s_lshl_b32 s{sT+1}, s{sPAR}, 7")
        I(f"s_add_u32 s{sT}, s{sT}, s{sT+1}")
        I(f"v_lshlrev_b32 v{VOFQ}, 16, v{L4}")
        I(f"v_lshl_add_u32 v{VOFQ}, v{L15}, 3, v{VOFQ}")
        I(f"v_add_u32 v{VOFQ}, s{sT}, v{VOFQ}")
        I(f"s_lshl_b32 s{sT}, s{sW}, 2")
        I(f"v_add_u32 v{T0}, s{sT}, v{L4}")
        I(f"v_and_b32 v{T0+1}, 15, v{T0}")
        I(f"v_xor_b32 v{T0+1}, v{T0+1}, v{L15}")
        I(f"v_lshlrev_b32 v{T0+1}, 4, v{T0+1}")
        I(f"v_lshl_add_u32 v{VOFK}, v{T0}, 8, v{T0+1}")
        I(f"v_lshlrev_b32 v{T0+1}, 2, v{L4}")
        I(f"v_xor_b32 v{T0+1}, v{T0+1}, v{L15}")
        I(f"v_lshlrev_b32 v{T0+1}, 4, v{T0+1}")
        I(f"v_lshl_add_u32 v{VOFV}, v{T0}, 8, v{T0+1}")
        a.raw("  s_waitcnt lgkmcnt(0)")
        I(f"s_lshl_b32 s{sT}, s{sB}, 15")
        I(f"s_add_u32 s{SX}, s{SX}, s{sT}")
        I(f"s_addc_u32 s{SX+1}, s{SX+1}, 0")
        I(f"s_mov_b32 s{SX+2}, 0x8000")
        I(f"s_mov_b32 s{SX+3}, 0x00020000")
        I(f"s_mov_b32 s{SWQ+2}, 0x400000")
        I(f"s_mov_b32 s{SWQ+3}, 0x00020000")
        I(f"s_lshl_b32 s{sT}, s{sB}, 3")
        I(f"s_add_u32 s{sT}, s{sT}, s{sKVH}")
        I(f"s_lshl_b32 s{sT}, s{sT}, 1")
        I(f"s_add_u32 s{sT}, s{sT}, s{sS}")
        I(f"s_lshl_b32 s{sT}, s{sT}, 18")
        for S in (SK, SV):
            I(f"s_add_u32 s{S}, s{S}, s{sT}")
            I(f"s_addc_u32 s{S+1}, s{S+1}, 0")
            I(f"s_mov_b32 s{S+2}, 0x40000")
            I(f"s_mov_b32 s{S+3}, 0x00020000")
        I(f"s_mov_b32 s{SWO+2}, 0x400000")
        I(f"s_mov_b32 s{SWO+3}, 0x00020000")
        I(f"s_mov_b32 s{SWS+2}, 0x10000000")
        I(f"s_mov_b32 s{SWS+3}, 0x00020000")
        I(f"s_mov_b32 s{SDBG+2}, 256")
        I(f"s_mov_b32 s{SDBG+3}, 0x00020000")

    def dma_item(self, kind, idx):
        a = self.a
        base = (KR if kind == 'K' else VR) + (idx % NS) * 8192
        a.I(f"s_add_u32 m0, s{sM0W}, {base}")
        a.I(f"s_mov_b32 s{sT+7}, {idx * 8192}")
        return a.I(f"buffer_load_dwordx4 v{VOFK if kind == 'K' else VOFV}, {srd(SK if kind == 'K' else SV)}, s{sT+7} offen nt lds")

    def head(self):
        a = self.a; I = a.I
        tok = {}
        xt = []
        I(f"s_lshl_b32 s{sT}, s{sW}, 2")
        I(f"s_lshl_b32 s{sT+1}, s{sW}, 12")
        I(f"s_add_u32 m0, s{sT+1}, {XA}")
        for j in range(4):
            I(f"s_add_u32 s{sT+2}, s{sT}, {j}")
            I(f"s_and_b32 s{sT+2}, s{sT+2}, 15")
            I(f"v_xor_b32 v{T0+j}, s{sT+2}, v{LANE}")
            I(f"v_lshlrev_b32 v{T0+j}, 4, v{T0+j}")
            xt.append(I(f"buffer_load_dwordx4 v{T0+j}, {srd(SX)}, s{sT+1} offen offset:{j*1024} lds"))
        ntw = " nt" if self.ntw else ""
        wqt = {}
        def wq_issue(ks):
            buf = (ks % 8) * 16
            ts = []
            for jj in range(8):
                I(f"s_mov_b32 s{sT+6}, {(32*ks+jj)*8192}")
                ts.append(I(f"buffer_load_dwordx2 {vr(buf+2*jj,2)}, v{VOFQ}, {srd(SWQ)}, s{sT+6} offen{ntw}"))
            wqt[ks] = ts[-1]
        order = ['K0','K1','V0','K2','K3','V1','V2','K4','K5','V3','V4','K6','K7','V5','K8','K9']
        oi = 0
        def kv_next():
            nonlocal oi
            if oi < len(order):
                it = order[oi]; oi += 1
                tok[it] = self.dma_item(it[0], int(it[1:]))
        for ks in range(self.wq_depth): wq_issue(ks)
        for _ in range(self.first_kv): kv_next()
        I(f"s_cmp_lg_u32 s{sW}, 0")
        I("s_cbranch_scc1 L_nozero")
        I(f"s_lshl_b32 s{sT}, s2, 7")
        I(f"s_add_u32 s{sT}, s{sT}, {FL_BASE}")
        I(f"v_mov_b32 v{T0+4}, 0")
        I(f"v_cmp_gt_u32 vcc, 8, v{LANE}")
        I(f"s_and_saveexec_b64 s[{sT+2}:{sT+3}], vcc")
        zt = I(f"buffer_store_dword v{T0+4}, v{LN16}, {srd(SWS)}, s{sT} offen sc1")
        I(f"s_mov_b64 exec, s[{sT+2}:{sT+3}]")
        I("s_branch L_zdone")
        a.label("L_nozero")
        I(f"buffer_load_dword v{DUMMY}, v{LN16}, {srd(SX)}, 0 offen"); a.vm -= 1
        a.label("L_zdone")
        I(f"v_xor_b32 v{T0}, v{HALF}, v{L15}")
        I(f"v_lshlrev_b32 v{T0}, 4, v{T0}")
        I(f"v_lshl_add_u32 v{T0}, v{L31}, 8, v{T0}")
        for s in range(8):
            I(f"v_xor_b32 v{KA+s}, {32*s}, v{T0}")
            I(f"v_add_u32 v{KA+8+s}, 0x10000, v{KA+s}")
        I(f"v_lshrrev_b32 v{T0}, 2, v{L15}")
        I(f"v_and_b32 v{T0+1}, 3, v{L15}")
        I(f"v_and_b32 v{T0+2}, 1, v{L4}")
        I(f"v_lshl_add_u32 v{T0+3}, v{HALF}, 2, v{T0}")
        I(f"v_lshlrev_b32 v{T0+3}, 8, v{T0+3}")
        I(f"v_lshl_add_u32 v{T0+3}, v{T0+2}, 5, v{T0+3}")
        I(f"v_lshl_add_u32 v{T0+3}, v{T0+1}, 3, v{T0+3}")
        I(f"v_add_u32 v{T0+3}, {VR}, v{T0+3}")
        for dt in range(4):
            I(f"v_xor_b32 v{T0+5}, {dt}, v{T0}")
            I(f"v_lshl_add_u32 v{VA+dt}, v{T0+5}, 6, v{T0+3}")
            I(f"v_add_u32 v{VA+4+dt}, 0x10000, v{VA+dt}")
        I(f"v_xor_b32 v{T0}, v{L4}, v{L15}")
        I(f"v_lshlrev_b32 v{T0}, 4, v{T0}")
        I(f"v_lshl_add_u32 v{T0}, v{L15}, 10, v{T0}")
        I(f"v_add_u32 v{T0}, {XA}, v{T0}")
        for q in range(4):
            I(f"v_xor_b32 v{XAD+q}, {64*q}, v{T0}")
        a.wait(xt[-1])
        I("s_barrier")
        self.stamp(1)
        ACC = 128; TT = 160
        xb = [VP, XB2]
        def xread(ks):
            b = xb[ks & 1]
            return [I(f"ds_read_b128 {vr(b+4*st,4)}, v{XAD+(ks&3)} offset:{st*16384+(ks>>2)*256}") for st in range(2)]
        xtok = {0: xread(0)}
        for ks in range(16):
            if ks + 1 < 16: xtok[ks+1] = xread(ks + 1)
            a.wait(wqt[ks])
            buf = (ks % 8) * 16
            for e in range(4):
                for m in range(4):
                    lo = buf + 2 * (2*m) + (e >> 1); hi = buf + 2 * (2*m+1) + (e >> 1)
                    I(f"v_perm_b32 v{TT+4*e+m}, v{hi}, v{lo}, s{sSEL1 if e & 1 else sSEL0}")
            if ks + self.wq_depth < 16: wq_issue(ks + self.wq_depth)
            kv_next()
            a.wait(xtok[ks])
            b = xb[ks & 1]
            for e in range(4):
                for st in range(2):
                    acc = ACC + (e * 2 + st) * 4
                    c = "0" if ks == 0 else vr(acc, 4)
                    I(f"v_mfma_f32_16x16x32_bf16 {vr(acc,4)}, {vr(TT+4*e,4)}, {vr(b+4*st,4)}, {c}")
        while oi < len(order): kv_next()
        assert a.vm_done > zt[1]
        I(f"s_cmp_lg_u32 s{sW}, 0")
        I("s_cbranch_scc1 L_noinit")
        I(f"v_mov_b32 v{T0+4}, 1")
        I(f"v_mov_b32 v{T0+5}, s2")
        I(f"v_cmp_eq_u32 vcc, 0, v{LANE}")
        I(f"s_and_saveexec_b64 s[{sT+2}:{sT+3}], vcc")
        I(f"buffer_store_byte v{T0+4}, v{T0+5}, {srd(SDBG)}, 0 offen sc1")
        I(f"s_mov_b64 exec, s[{sT+2}:{sT+3}]")
        I("s_branch L_idone")
        a.label("L_noinit")
        I(f"buffer_load_dword v{DUMMY}, v{LN16}, {srd(SX)}, 0 offen"); a.vm -= 1
        a.label("L_idone")
        a.fence(8)
        a.wait_all(vm=False)
        I("s_barrier")
        I(f"s_lshl_b32 s{sT}, s{sPAR}, 3")
        I(f"s_lshl_b32 s{sT+1}, s{sH}, 13")
        I(f"s_add_u32 s{sT+1}, s{sT+1}, {XA}")
        I(f"v_lshl_add_u32 v{T0}, v{L4}, 1, s{sT}")
        I(f"v_xor_b32 v{T0}, v{T0}, v{L15}")
        I(f"v_lshlrev_b32 v{T0}, 4, v{T0}")
        I(f"v_lshl_add_u32 v{T0}, v{L15}, 8, v{T0}")
        I(f"v_add_u32 v{T0}, s{sT+1}, v{T0}")
        I(f"v_xor_b32 v{T0+1}, 16, v{T0}")
        for st in range(2):
            for rr in range(2):
                g = TT + (st * 2 + rr) * 4
                for q in range(2):
                    r = 2 * rr + q
                    A = lambda e: ACC + (e * 2 + st) * 4 + r
                    I(f"v_cvt_pk_bf16_f32 v{g+2*q}, v{A(0)}, v{A(1)}")
                    I(f"v_cvt_pk_bf16_f32 v{g+2*q+1}, v{A(2)}, v{A(3)}")
                I(f"ds_write_b128 v{T0+rr}, {vr(g,4)} offset:{st*4096}")
        a.wait_all(vm=False)
        I("s_barrier")
        for s in range(8):
            I(f"v_add_u32 v{T0+(s&3)}, s{sT+1}, v{KA+s}")
            I(f"ds_read_b128 {vr(VQ+4*s,4)}, v{T0+(s&3)}")
        for j in range(4): I(f"v_mov_b32 v{L0+j}, 0")
        a.wait_all(vm=False)
        self.stamp(2)
        return tok

    def kread(self, u):
        I = self.a.I
        slot = u % NS
        base = KA + (8 if slot >= 8 else 0); off = (slot % 8) * 8192
        return [I(f"ds_read_b128 {vr(VK+4*s,4)}, v{base+s} offset:{off}") for s in range(8)]
    def vread(self, u):
        I = self.a.I
        slot = u % NS
        base = VA + (4 if slot >= 8 else 0); off = (slot % 8) * 8192
        ts = []
        for ks in range(2):
            for dt in range(4):
                for pj in range(2):
                    ts.append(I(f"ds_read_b64_tr_b16 {vr(VV+16*ks+4*dt+2*pj,2)}, v{base+dt} offset:{off+(16*ks+8*pj)*256}"))
        return ts
    def qk(self, kt):
        a = self.a
        for s in range(8):
            a.wait(kt[s])
            c = "0" if s == 0 else vr(VS, 16)
            a.I(f"v_mfma_f32_32x32x16_bf16 {vr(VS,16)}, {vr(VK+4*s,4)}, {vr(VQ+4*s,4)}, {c}")
    def softmax(self, first, tag):
        a = self.a; I = a.I
        I(f"v_max3_f32 v{T0}, v{VS}, v{VS+1}, v{VS+2}")
        I(f"v_max3_f32 v{T0+1}, v{VS+3}, v{VS+4}, v{VS+5}")
        I(f"v_max3_f32 v{T0+2}, v{VS+6}, v{VS+7}, v{VS+8}")
        I(f"v_max3_f32 v{T0+3}, v{VS+9}, v{VS+10}, v{VS+11}")
        I(f"v_max3_f32 v{T0}, v{T0}, v{VS+12}, v{VS+13}")
        I(f"v_max3_f32 v{T0+1}, v{T0+1}, v{VS+14}, v{VS+15}")
        I(f"v_max3_f32 v{T0}, v{T0}, v{T0+1}, v{T0+2}")
        I(f"v_max_f32 v{T0}, v{T0}, v{T0+3}")
        I(f"v_mov_b32 v{T0+1}, v{T0}")
        I(f"v_permlane32_swap_b32 v{T0}, v{T0+1}")
        I(f"v_max_f32 v{T0}, v{T0}, v{T0+1}")
        if first:
            I(f"v_mov_b32 v{M}, v{T0}")
            I(f"v_mul_f32 v{NMC}, s{sC}, v{M}")
            I(f"v_sub_f32 v{NMC}, 0, v{NMC}")
            I(f"v_add_f32 v{MT}, 0x{f32(TRAW):08x}, v{M}")
        else:
            I(f"v_cmp_gt_f32 vcc, v{T0}, v{MT}")
            I(f"s_cbranch_vccz L_nr_{tag}")
            I(f"s_call_b64 s[{sRET}:{sRET+1}], L_rescale")
            a.label(f"L_nr_{tag}", conservative=False)
        for r in range(16):
            I(f"v_fma_f32 v{VS+r}, v{VS+r}, s{sC}, v{NMC}")
        for r in range(16):
            I(f"v_exp_f32 v{VS+r}, v{VS+r}")
        for j in range(8):
            I(f"v_cvt_pk_bf16_f32 v{VP+j}, v{VS+2*j}, v{VS+2*j+1}")
        for r in range(16):
            I(f"v_add_f32 v{L0+(r&3)}, v{L0+(r&3)}, v{VS+r}")
    def pv(self, vt, first):
        a = self.a
        for ks in range(2):
            for dt in range(4):
                a.wait(vt[(ks * 4 + dt) * 2 + 1])
                c = "0" if (first and ks == 0) else vr(VO + 16*dt, 16)
                a.I(f"v_mfma_f32_32x32x16_bf16 {vr(VO+16*dt,16)}, {vr(VV+16*ks+4*dt,4)}, {vr(VP+4*ks,4)}, {c}")

    def mainloop(self, tok0, par):
        a = self.a; I = a.I
        tok = dict(tok0)
        for i in range(17):
            need = [f"K{2*i}", f"K{2*i+1}", f"V{2*i-1}", f"V{2*i}"]
            need = [n for n in need if 0 <= int(n[1:]) < 32]
            a.wait([tok[n] for n in need])
            a.wait_all(vm=False)
            I("s_barrier")
            if i == 0:
                new = ['V6', 'V7', 'V8', 'V9']
            else:
                j = i - 1
                new = [f"K{2*j+NS}", f"K{2*j+1+NS}", f"V{2*j-1+NS}", f"V{2*j+NS}"]
                if j == 0: new = [n for n in new if n != f"V{NS-1}"]
            new = [n for n in new if int(n[1:]) < 32]
            def refill():
                for n in new: tok[n] = self.dma_item(n[0], int(n[1:]))
            if i == 8:
                I(f"s_xor_b32 s{sT}, s2, 8")
                I(f"v_mov_b32 v{T8}, s{sT}")
                self.initb_tok = I(f"buffer_load_ubyte v{INITB}, v{T8}, {srd(SDBG)}, 0 offen sc1")
            if par == 0:
                if i < 16:
                    kt = self.kread(2*i)
                    refill()
                    vt = self.vread(2*i)
                    self.qk(kt)
                    self.softmax(i == 0, f"a{i}")
                    self.pv(vt, i == 0)
                else:
                    refill()
            else:
                vt = self.vread(2*i-1) if i >= 1 else None
                refill()
                kt = self.kread(2*i+1) if i < 16 else None
                if i >= 1:
                    self.softmax(i == 1, f"b{i}")
                    self.pv(vt, i == 1)
                if i < 16:
                    self.qk(kt)

    def rescale_sub(self):
        a = self.a; I = a.I
        a.label("L_rescale")
        a.fence(16)
        I(f"v_max_f32 v{T0}, v{T0}, v{M}")
        I(f"v_sub_f32 v{T0+1}, v{M}, v{T0}")
        I(f"v_mul_f32 v{T0+1}, s{sC}, v{T0+1}")
        I(f"v_exp_f32 v{T0+1}, v{T0+1}")
        I(f"v_mov_b32 v{M}, v{T0}")
        I(f"v_mul_f32 v{NMC}, s{sC}, v{M}")
        I(f"v_sub_f32 v{NMC}, 0, v{NMC}")
        I(f"v_add_f32 v{MT}, 0x{f32(TRAW):08x}, v{M}")
        for r in range(64): I(f"v_mul_f32 v{VO+r}, v{VO+r}, v{T0+1}")
        for j in range(4): I(f"v_mul_f32 v{L0+j}, v{L0+j}, v{T0+1}")
        a.fence(4)
        I(f"s_setpc_b64 s[{sRET}:{sRET+1}]")

    def tail(self, par):
        a = self.a; I = a.I
        sfx = f"p{par}"
        self.stamp(3)
        CB = 0; STA = 65536
        own = [2*par, 2*par+1]; oth = [2*(1-par), 2*(1-par)+1]
        LT = L0
        I(f"v_add_f32 v{L0}, v{L0}, v{L0+1}")
        I(f"v_add_f32 v{L0+2}, v{L0+2}, v{L0+3}")
        I(f"v_add_f32 v{L0}, v{L0}, v{L0+2}")
        I(f"v_mov_b32 v{L0+1}, v{L0}")
        I(f"v_permlane32_swap_b32 v{L0}, v{L0+1}")
        I(f"v_add_f32 v{NMC}, v{L0}, v{L0+1}")
        LT = NMC
        I(f"s_lshl_b32 s{sT}, s{sW}, 13")
        I(f"v_add_u32 v{T0}, s{sT}, v{LN16}")
        for q in range(8):
            I(f"ds_write_b128 v{T0}, {vr(VO+16*oth[0]+4*q,4)} offset:{CB+q*1024}")
        I(f"s_lshl_b32 s{sT+1}, s{sW}, 9")
        I(f"s_add_u32 s{sT+1}, s{sT+1}, {STA}")
        I(f"v_lshl_add_u32 v{T0+1}, v{LANE}, 3, s{sT+1}")
        I(f"ds_write_b64 v{T0+1}, {vr(M,2)}")
        a.wait_all(vm=False)
        I("s_barrier")
        I(f"v_xor_b32 v{T0}, 0x8000, v{T0}")
        I(f"v_xor_b32 v{T0+1}, 0x800, v{T0+1}")
        PB = 64
        st = I(f"ds_read_b64 {vr(T0+2,2)}, v{T0+1}")
        rt = [I(f"ds_read_b128 {vr(PB+4*q,4)}, v{T0} offset:{CB+q*1024}") for q in range(8)]
        a.wait(st)
        FA, FB, MM = T0+4, T0+5, T0+6
        I(f"v_max_f32 v{MM}, v{M}, v{T0+2}")
        I(f"v_sub_f32 v{FA}, v{M}, v{MM}")
        I(f"v_sub_f32 v{FB}, v{T0+2}, v{MM}")
        I(f"v_mul_f32 v{FA}, s{sC}, v{FA}")
        I(f"v_mul_f32 v{FB}, s{sC}, v{FB}")
        I(f"v_exp_f32 v{FA}, v{FA}")
        I(f"v_exp_f32 v{FB}, v{FB}")
        I(f"v_mov_b32 v{M}, v{MM}")
        I(f"v_mul_f32 v{LT}, v{LT}, v{FA}")
        I(f"v_fma_f32 v{LT}, v{T0+3}, v{FB}, v{LT}")
        I(f"v_rcp_f32 v{T0+7}, v{LT}")
        OW = VO + 16 * own[0]
        for r in range(32): I(f"v_mul_f32 v{OW+r}, v{OW+r}, v{FA}")
        for q in range(8):
            a.wait(rt[q])
            for r in range(4): I(f"v_fma_f32 v{OW+4*q+r}, v{PB+4*q+r}, v{FB}, v{OW+4*q+r}")
        PK = VO + 16 * oth[0]
        NB = 96
        for r in range(32): I(f"v_mul_f32 v{NB+r}, v{OW+r}, v{T0+7}")
        for j in range(16): I(f"v_cvt_pk_bf16_f32 v{PK+j}, v{NB+2*j}, v{NB+2*j+1}")
        I(f"s_lshl_b32 s{sT}, s2, 3")
        I(f"s_add_u32 s{sT}, s{sT}, s{sW}")
        I(f"s_mul_i32 s{sT}, s{sT}, {XO_STRIDE}")
        for q in range(4):
            I(f"buffer_store_dwordx4 {vr(PK+4*q,4)}, v{LN16}, {srd(SWS)}, s{sT} offen offset:{q*1024} sc1")
        I(f"s_add_u32 s{sT+1}, s{sT}, 4096")
        I(f"v_lshlrev_b32 v{T0}, 3, v{LANE}")
        lastst = I(f"buffer_store_dwordx2 {vr(M,2)}, v{T0}, {srd(SWS)}, s{sT+1} offen sc1")
        VOFW = VOFK
        I(f"s_lshl_b32 s{sT}, s{sW}, 2")
        I(f"v_add_u32 v{T0}, s{sT}, v{L4}")
        I(f"v_lshlrev_b32 v{T0+1}, 2, v{L4}")
        I(f"v_xor_b32 v{T0+1}, v{T0+1}, v{L15}")
        I(f"v_lshlrev_b32 v{T0+1}, 4, v{T0+1}")
        I(f"v_lshl_add_u32 v{VOFW}, v{T0}, 10, v{T0+1}")
        sWB = sT + 4
        I(f"s_lshl_b32 s{sWB}, s{sKVH}, 19")
        I(f"s_lshl_b32 s{sT}, s{sS}, 9")
        I(f"s_add_u32 s{sWB}, s{sWB}, s{sT}")
        def wdma(t, slot):
            hb, nh2 = t >> 1, t & 1
            I(f"s_add_u32 m0, s{sM0W}, {slot*8192}")
            I(f"s_add_u32 s{sT+7}, s{sWB}, {hb*32768 + nh2*256}")
            return I(f"buffer_load_dwordx4 v{VOFW}, {srd(SWO)}, s{sT+7} offen lds")
        rounds = [(list(range(0, 10)), list(range(10, 20))),
                  (list(range(10, 26)), list(range(4, 20))),
                  (list(range(26, 32)), list(range(4, 10)))]
        w1 = [wdma(t, s) for t, s in zip(*rounds[0])]
        a.wait(lastst)
        I(f"s_lshl_b32 s{sT}, s2, 7")
        I(f"s_lshl_b32 s{sT+1}, s{sW}, 4")
        I(f"s_add_u32 s{sT}, s{sT}, s{sT+1}")
        I(f"s_add_u32 s{sT}, s{sT}, {FL_BASE}")
        I(f"v_mov_b32 v{T0}, 1")
        I(f"v_mov_b32 v{T0+1}, 0")
        I(f"v_cmp_eq_u32 vcc, 0, v{LANE}")
        I(f"s_and_saveexec_b64 s[{sT+2}:{sT+3}], vcc")
        I(f"buffer_store_dword v{T0}, v{T0+1}, {srd(SWS)}, s{sT} offen sc1")
        I(f"s_mov_b64 exec, s[{sT+2}:{sT+3}]")
        self.stamp(4)
        WA = KA
        I(f"v_lshrrev_b32 v{T0}, 2, v{L15}")
        I(f"v_and_b32 v{T0+1}, 3, v{L15}")
        I(f"v_and_b32 v{T0+2}, 1, v{L4}")
        I(f"v_lshl_add_u32 v{T0+3}, v{HALF}, 3, v{T0}")
        I(f"v_lshlrev_b32 v{T0+3}, 8, v{T0+3}")
        I(f"v_lshl_add_u32 v{T0+3}, v{T0+2}, 5, v{T0+3}")
        I(f"v_lshl_add_u32 v{T0+3}, v{T0+1}, 3, v{T0+3}")
        I(f"v_xor_b32 v{T0}, s{sH}, v{T0}")
        I(f"v_lshl_add_u32 v{VA}, v{T0}, 6, v{T0+3}")
        I(f"v_add_u32 v{VA+1}, 0x10000, v{VA}")
        I(f"v_add_u32 v{VA+2}, 0x20000, v{VA}")
        AF = 64
        def wread(rd):
            for t, slot in zip(*rd):
                if (t & 1) != par: continue
                hb = t >> 1
                for ks in range(2):
                    for pj in range(2):
                        I(f"ds_read_b64_tr_b16 {vr(AF+4*(2*hb+ks)+2*pj,2)}, v{VA+slot//8} offset:{(slot%8)*8192+(16*ks+4*pj)*256}")
        a.wait(w1[-1])
        a.wait_all(vm=False)
        I("s_barrier")
        wread(rounds[0])
        a.wait_all(vm=False)
        I("s_barrier")
        w2 = [wdma(t, s) for t, s in zip(*rounds[1])]
        I(f"s_xor_b32 s{sT+2}, s2, 8")
        I(f"v_mov_b32 v{T8}, s{sT+2}")
        I(f"s_mov_b32 s{sCNT}, 0")
        a.label(f"L_ib_{sfx}")
        I(f"v_readfirstlane_b32 s{sT}, v{INITB}")
        I(f"s_cmp_lg_u32 s{sT}, 0")
        I(f"s_cbranch_scc1 L_ibok_{sfx}")
        I(f"buffer_load_ubyte v{INITB}, v{T8}, {srd(SDBG)}, 0 offen sc1"); a.vm -= 1
        a.raw("  s_waitcnt vmcnt(0)")
        I(f"s_add_u32 s{sCNT}, s{sCNT}, 1")
        I(f"s_cmp_lt_u32 s{sCNT}, 0x40000")
        I(f"s_cbranch_scc1 L_ib_{sfx}")
        a.label(f"L_ibok_{sfx}")
        I(f"s_lshl_b32 s{sT}, s{sT+2}, 7")
        I(f"s_lshl_b32 s{sT+1}, s{sW}, 4")
        I(f"s_add_u32 s{sT}, s{sT}, s{sT+1}")
        I(f"s_add_u32 s{sT}, s{sT}, {FL_BASE}")
        I(f"v_mov_b32 v{T0+1}, 0")
        I(f"s_mov_b32 s{sCNT}, 0")
        a.label(f"L_poll_{sfx}")
        I(f"buffer_load_dword v{T0}, v{T0+1}, {srd(SWS)}, s{sT} offen sc1"); a.vm -= 1
        a.raw("  s_waitcnt vmcnt(0)"); a.vm_done = a.vm
        I(f"v_readfirstlane_b32 s{sT+1}, v{T0}")
        I(f"s_cmp_eq_u32 s{sT+1}, 1")
        I(f"s_cbranch_scc1 L_pok_{sfx}")
        I(f"s_add_u32 s{sCNT}, s{sCNT}, 1")
        I(f"s_cmp_lt_u32 s{sCNT}, 0x40000")
        I(f"s_cbranch_scc1 L_poll_{sfx}")
        a.label(f"L_pok_{sfx}")
        self.stamp(5)
        I(f"s_lshl_b32 s{sT}, s{sT+2}, 3")
        I(f"s_add_u32 s{sT}, s{sT}, s{sW}")
        I(f"s_mul_i32 s{sT}, s{sT}, {XO_STRIDE}")
        I(f"s_add_u32 s{sT+1}, s{sT}, 4096")
        I(f"v_lshlrev_b32 v{T0}, 3, v{LANE}")
        st = I(f"buffer_load_dwordx2 {vr(T0+2,2)}, v{T0}, {srd(SWS)}, s{sT+1} offen sc1")
        rt = [I(f"buffer_load_dwordx4 {vr(PK+4*q,4)}, v{LN16}, {srd(SWS)}, s{sT} offen offset:{q*1024} sc1") for q in range(4)]
        OA = 0
        I(f"s_lshl_b32 s{sT}, s{sH}, 8")
        I(f"v_lshl_add_u32 v{T8}, v{L31}, 10, s{sT}")
        I(f"v_lshl_add_u32 v{T8}, v{L15}, 4, v{T8}")
        I(f"v_lshl_add_u32 v{T8}, v{HALF}, 3, v{T8}")
        if par: I(f"v_xor_b32 v{T8}, 128, v{T8}")
        BA = 192
        I(f"v_xor_b32 v{T8+1}, v{HALF}, v{L15}")
        I(f"v_lshlrev_b32 v{T8+1}, 4, v{T8+1}")
        I(f"v_lshl_add_u32 v{T8+1}, v{L31}, 10, v{T8+1}")
        for s in range(8): I(f"v_xor_b32 v{BA+s}, {32*s}, v{T8+1}")
        a.wait(st)
        I(f"v_max_f32 v{MM}, v{M}, v{T0+2}")
        I(f"v_sub_f32 v{FA}, v{M}, v{MM}")
        I(f"v_sub_f32 v{FB}, v{T0+2}, v{MM}")
        I(f"v_mul_f32 v{FA}, s{sC}, v{FA}")
        I(f"v_mul_f32 v{FB}, s{sC}, v{FB}")
        I(f"v_exp_f32 v{FA}, v{FA}")
        I(f"v_exp_f32 v{FB}, v{FB}")
        I(f"v_mul_f32 v{FB}, v{FB}, v{T0+3}")
        I(f"v_fma_f32 v{LT}, v{LT}, v{FA}, v{FB}")
        I(f"v_rcp_f32 v{T0+7}, v{LT}")
        I(f"v_mul_f32 v{FA}, v{FA}, v{T0+7}")
        I(f"v_mul_f32 v{FB}, v{FB}, v{T0+7}")
        for r in range(32): I(f"v_mul_f32 v{OW+r}, v{OW+r}, v{FA}")
        TP = PK + 16
        for q in range(4):
            a.wait(rt[q])
            for j in range(4):
                src = PK + 4*q + j; r = 8*q + 2*j
                I(f"v_lshlrev_b32 v{TP+(j&1)*2}, 16, v{src}")
                I(f"v_and_b32 v{TP+(j&1)*2+1}, 0xffff0000, v{src}")
                I(f"v_fma_f32 v{OW+r}, v{TP+(j&1)*2}, v{FB}, v{OW+r}")
                I(f"v_fma_f32 v{OW+r+1}, v{TP+(j&1)*2+1}, v{FB}, v{OW+r+1}")
        for g in range(8):
            I(f"v_cvt_pk_bf16_f32 v{TP+4+2*(g&3)}, v{OW+4*g}, v{OW+4*g+1}")
            I(f"v_cvt_pk_bf16_f32 v{TP+5+2*(g&3)}, v{OW+4*g+2}, v{OW+4*g+3}")
            I(f"v_xor_b32 v{T8+2+(g&3)}, {16*g}, v{T8}")
            I(f"ds_write_b64 v{T8+2+(g&3)}, {vr(TP+4+2*(g&3),2)} offset:{OA}")
        a.wait_all()
        I("s_barrier")
        wread(rounds[1])
        a.wait_all(vm=False)
        I("s_barrier")
        w3 = [wdma(t, s) for t, s in zip(*rounds[2])]
        a.wait_all()
        I("s_barrier")
        wread(rounds[2])
        self.stamp(6)
        ACC = 0
        BF = 16
        bt = {}
        def bread(kk):
            bt[kk] = I(f"ds_read_b128 {vr(BF+4*(kk&7),4)}, v{BA+(kk&7)} offset:{OA+(kk>>3)*256}")
        for kk in range(6): bread(kk)
        for kk in range(32):
            if kk + 6 < 32: bread(kk + 6)
            a.wait(bt[kk])
            c = "0" if kk == 0 else vr(ACC, 16)
            I(f"v_mfma_f32_32x32x16_bf16 {vr(ACC,16)}, {vr(AF+4*kk,4)}, {vr(BF+4*(kk&7),4)}, {c}")
        I(f"s_lshl_b32 s{sT}, s{sBLK}, 3")
        I(f"s_add_u32 s{sT}, s{sT}, s{sB}")
        I(f"s_lshl_b32 s{sT}, s{sT}, 1")
        I(f"s_add_u32 s{sT}, s{sT}, s{sS}")
        I(f"s_lshl_b32 s{sT}, s{sT}, 3")
        I(f"s_add_u32 s{sT}, s{sT}, s{sW}")
        I(f"s_lshl_b32 s{sT}, s{sT}, 15")
        I(f"s_lshl_b32 s{sT+1}, s{sKVH}, 12")
        I(f"s_add_u32 s{sT}, s{sT}, s{sT+1}")
        I(f"s_add_u32 s{sT}, s{sT}, {CP_BASE}")
        for q in range(4):
            I(f"buffer_store_dwordx4 {vr(ACC+4*q,4)}, v{LN16}, {srd(SWS)}, s{sT} offen offset:{q*1024}")
        if self.stamps:
            a.wait_all()
            self.stamp(7)
            n = self.nst
            I(f"s_lshl_b32 s{sT}, s2, 3")
            I(f"s_add_u32 s{sT}, s{sT}, s{sW}")
            I(f"s_mul_i32 s{sT}, s{sT}, {n*8}")
            I(f"s_add_u32 s{sT}, s{sT}, {ST_BASE}")
            I(f"v_mov_b32 v{T0+2}, 0")
            I(f"v_cmp_eq_u32 vcc, 0, v{LANE}")
            I(f"s_and_saveexec_b64 s[{sT+2}:{sT+3}], vcc")
            for j in range(n):
                I(f"v_mov_b32 v{T0}, s{sST+2*j}")
                I(f"v_mov_b32 v{T0+1}, s{sST+2*j+1}")
                I(f"buffer_store_dwordx2 {vr(T0,2)}, v{T0+2}, {srd(SWS)}, s{sT} offen offset:{8*j}")
                a.fence(2)
        I("s_branch L_end")

    def reduce_kernel(self):
        a = Asm(); I = a.I
        a.raw(".p2align 8")
        a.raw(".globl reduce_kernel")
        a.raw(".type reduce_kernel,@function")
        a.raw("reduce_kernel:")
        I("s_cmp_ge_u32 s2, 256")
        I("s_cbranch_scc1 L_rend")
        I("s_load_dwordx2 s[4:5], s[0:1], 96")
        I("s_load_dwordx2 s[8:9], s[0:1], 80")
        I("v_lshlrev_b32 v1, 4, v0")
        I("s_lshl_b32 s12, s2, 15")
        I(f"s_add_u32 s12, s12, {CP_BASE}")
        I("s_and_b32 s13, s2, 15")
        I("s_lshr_b32 s14, s2, 4")
        I("s_and_b32 s15, s14, 7")
        I("s_lshr_b32 s14, s14, 3")
        I("s_lshl_b32 s15, s15, 16")
        I("s_lshl_b32 s14, s14, 10")
        I("s_lshl_b32 s13, s13, 6")
        I("s_add_u32 s15, s15, s14")
        I("s_add_u32 s15, s15, s13")
        I("v_and_b32 v2, 31, v0")
        I("v_lshrrev_b32 v3, 6, v0")
        I("v_bfe_u32 v4, v0, 5, 1")
        I("v_lshlrev_b32 v2, 11, v2")
        I("v_lshl_add_u32 v2, v3, 4, v2")
        I("v_lshl_add_u32 v2, v4, 3, v2")
        a.raw("  s_waitcnt lgkmcnt(0)")
        I("s_mov_b32 s6, 0x10000000")
        I("s_mov_b32 s7, 0x00020000")
        I("s_mov_b32 s10, 0x80000")
        I("s_mov_b32 s11, 0x00020000")
        ts = []
        for k in range(8):
            I(f"s_add_u32 s16, s12, {k*4096}")
            ts.append(I(f"buffer_load_dwordx4 v[{8+4*k}:{11+4*k}], v1, s[4:7], s16 offen"))
        for k in range(1, 8):
            a.wait(ts[k])
            for r in range(4): I(f"v_add_f32 v{8+r}, v{8+r}, v{8+4*k+r}")
        I("v_cvt_pk_bf16_f32 v4, v8, v9")
        I("v_cvt_pk_bf16_f32 v5, v10, v11")
        I("buffer_store_dwordx2 v[4:5], v2, s[8:11], s15 offen")
        a.label("L_rend")
        I("s_endpgm")
        return a.text()

    def build(self):
        a = self.a
        self.prologue()
        tok = self.head()
        snap = a.snapshot()
        a.I(f"s_cmp_lg_u32 s{sPAR}, 0")
        a.I("s_cbranch_scc1 L_varB")
        self.mainloop(tok, 0)
        self.tail(0)
        a.label("L_varB")
        a.restore(snap)
        self.mainloop(tok, 1)
        self.tail(1)
        self.rescale_sub()
        a.label("L_end")
        a.I("s_endpgm")
        main = f"{NAME}_kernel"
        out = HEADER
        out += f"; @launch kernel={main} grid=(256,1,1) block=(512,1,1) lds=163840\n"
        out += "; @launch kernel=reduce_kernel grid=(256,1,1) block=(256,1,1) lds=0\n"
        out += '.amdgcn_target "amdgcn-amd-amdhsa--gfx950"\n.text\n'
        out += f".globl {main}\n.p2align 8\n.type {main},@function\n{main}:\n"
        out += a.text()
        out += self.reduce_kernel()
        out += '.section .rodata,"a"\n.p2align 6\n'
        for k, vg, sg in ((main, 256, 96), ("reduce_kernel", 48, 24)):
            out += f""".amdhsa_kernel {k}
  .amdhsa_next_free_vgpr {vg}
  .amdhsa_next_free_sgpr {sg}
  .amdhsa_accum_offset {vg}
  .amdhsa_group_segment_fixed_size 0
  .amdhsa_kernarg_size 104
  .amdhsa_user_sgpr_count 2
  .amdhsa_user_sgpr_kernarg_segment_ptr 1
  .amdhsa_system_sgpr_workgroup_id_x 1
.end_amdhsa_kernel
.p2align 6
"""
        return out

if __name__ == "__main__":
    g = Gen(stamps=False); open("v1.s", "w").write(g.build())
    print("nops", g.a.nops, "lines", len(g.a.lines))
    g = Gen(stamps=True); open("v1s.s", "w").write(g.build()); print("nst", g.nst)
```
